```python
import torch

def _softmax(x, axis=-1):
    return torch.softmax(x, dim=axis)
def _gelu(x):
    return torch.nn.functional.gelu(x, approximate="tanh")
def _silu(x):
    return torch.nn.functional.silu(x)
def _sigmoid(x):
    return torch.sigmoid(x)
def _layernorm(x, axis=-1, eps=1e-5):
    m = x.mean(dim=axis, keepdim=True)
    v = x.var(dim=axis, keepdim=True, unbiased=False)
    return (x - m) / torch.sqrt(v + eps)
def _scatter_add(tgt, idx, src, axis=0):
    return tgt.clone().index_add_(axis, idx, src)
def _segment_sum(src, seg, n):
    out = torch.zeros((n,) + src.shape[1:], dtype=src.dtype)
    return out.index_add_(0, seg, src)
def _pad(x, pw):
    flat = tuple(v for pair in reversed(pw) for v in pair)
    return torch.nn.functional.pad(x, flat)

kernel_name = 'interleave_layers__ssm_conv_h3__glu_gated_bilinear__prompt'

def setup_inputs():

    _w = (lambda a: (lambda t: t.to(torch.bfloat16) if t.is_floating_point() else t)(torch.as_tensor(a)))
    def _A_setup():
        B, S, D = 1, 2048, 448
        ks = 4
        return {
            "q": _w((lambda *s: torch.randn(*s, dtype=torch.bfloat16) * 0.05)(B, S, D)),
            "k": _w((lambda *s: torch.randn(*s, dtype=torch.bfloat16) * 0.4)(B, S, D)),
            "v": _w((lambda *s: torch.randn(*s, dtype=torch.bfloat16) * 0.4)(B, S, D)),
            "shift_k": _w((lambda *s: torch.randn(*s, dtype=torch.bfloat16) * 0.4)(D, ks) * 0.5),
            "ssm_k": _w((lambda *s: torch.randn(*s, dtype=torch.bfloat16) * 0.4)(D, S) * (1.0 / S ** 0.5)),
            "ssm_D": _w((lambda *s: torch.randn(*s, dtype=torch.bfloat16) * 0.4)(D)),
        }
    _A_in = _A_setup()

    def _B_setup():
        B, S, D, F = 1, 2048, 448, 1792
        return {
            "x": _w((lambda *s: torch.randn(*s, dtype=torch.bfloat16) * 0.05)(B, S, D)),
            "w_gate": _w((lambda *s: torch.randn(*s, dtype=torch.bfloat16) * 0.8)(D, F) * (D ** -0.5)),
            "w_up": _w((lambda *s: torch.randn(*s, dtype=torch.bfloat16) * 0.8)(D, F) * (D ** -0.5)),
            "w_down": _w((lambda *s: torch.randn(*s, dtype=torch.bfloat16) * 0.8)(F, D) * (F ** -0.5)),
        }
    _B_in = _B_setup()

    return {
        "A_q": _A_in["q"],
        "A_k": _A_in["k"],
        "A_v": _A_in["v"],
        "A_shift_k": _A_in["shift_k"],
        "A_ssm_k": _A_in["ssm_k"],
        "A_ssm_D": _A_in["ssm_D"],
        "B_x": _B_in["x"],
        "B_w_gate": _B_in["w_gate"],
        "B_w_up": _B_in["w_up"],
        "B_w_down": _B_in["w_down"],
    }

def reference(A_q, A_k, A_v, A_shift_k, A_ssm_k, A_ssm_D, B_x, B_w_gate, B_w_up, B_w_down):
    def _A_ref(q, k, v, shift_k, ssm_k, ssm_D):
        B, S, D = q.shape
        ks = shift_k.shape[-1]
        k_pad = _pad(k, ((0, 0), (ks - 1, 0), (0, 0)))
        k_shift = torch.zeros_like(k)
        for t in range(ks):
            k_shift = k_shift + k_pad[:, t:t + S, :] * shift_k[:, ks - 1 - t][None, None, :]
        kv = k_shift * v
        L = 2 * S
        kv_pad = _pad(kv, ((0, 0), (0, S), (0, 0)))
        kf_pad = _pad(ssm_k, ((0, 0), (0, S)))
        kv_f = (lambda x, axes=(-2,-1): torch.fft.rfft2(x.float(), dim=axes))(kv_pad[:, None, :, :], axes=(1, 2))
        kf_f = (lambda x, axes=(-2,-1): torch.fft.rfft2(x.float(), dim=axes))(kf_pad[:, None, :], axes=(1, 2))
        kf_f = (lambda x, *d: x.permute(*d))(kf_f, 1, 2, 0)
        y_f = kv_f * kf_f[None, :, :, :]
        y = (lambda x, s, axes=(-2,-1): torch.fft.irfft2(x, s=s, dim=axes).to(torch.bfloat16))(y_f, (1, L), axes=(1, 2))[:, 0, :S, :]
        y = y + kv * ssm_D[None, None, :]
        return q * y

    def _B_ref(x, w_gate, w_up, w_down):
        g = torch.einsum("bsd,df->bsf", x, w_gate)
        u = torch.einsum("bsd,df->bsf", x, w_up)
        h = g * u
        return torch.einsum("bsf,fd->bsd", h, w_down)

    x = A_q
    x = x + _A_ref(_layernorm(x, axis=-1), A_k, A_v, A_shift_k, A_ssm_k, A_ssm_D)
    x = x + _B_ref(_layernorm(x, axis=-1), B_w_gate, B_w_up, B_w_down)
    x = x + _A_ref(_layernorm(x, axis=-1), A_k, A_v, A_shift_k, A_ssm_k, A_ssm_D)
    x = x + _B_ref(_layernorm(x, axis=-1), B_w_gate, B_w_up, B_w_down)
    return x
```

```python
import re


class Asm:
    def __init__(self):
        self.lines = []

    def __call__(self, s):
        for ln in s.split("\n"):
            ln = ln.strip()
            if ln:
                self.lines.append(ln)

    def ext(self, lst):
        for s in lst:
            self(s)

    def label(self, name):
        self.lines.append(name + ":")

    def comment(self, s):
        self.lines.append("; " + s)

    def text(self):
        out = []
        for ln in self.lines:
            if ln.endswith(":") or ln.startswith("."):
                out.append(ln)
            else:
                out.append("    " + ln)
        return "\n".join(out) + "\n"


def vr(a, n=1):
    return f"v{a}" if n == 1 else f"v[{a}:{a + n - 1}]"


def ar(a, n=1):
    return f"a{a}" if n == 1 else f"a[{a}:{a + n - 1}]"


def sr(a, n=1):
    return f"s{a}" if n == 1 else f"s[{a}:{a + n - 1}]"


def weave(mains, fills):
    out = list(fills.get(-1, []))
    for i, m in enumerate(mains):
        out.append(m)
        out += fills.get(i, [])
    extra = [k for k in fills if k >= len(mains) or k < -1]
    assert not extra, extra
    return out


_REG = re.compile(r"^(-|abs\()?([vas])(?:(\d+)|\[(\d+):(\d+)\])\)?$")


def _regs(tok):
    tok = tok.strip()
    if tok in ("vcc",):
        return {("s", "vcc")}
    if tok in ("exec",):
        return {("s", "exec")}
    if tok == "m0":
        return {("s", "m0")}
    m = _REG.match(tok)
    if not m:
        return set()
    k = m.group(2)
    if m.group(3) is not None:
        return {(k, int(m.group(3)))}
    return {(k, i) for i in range(int(m.group(4)), int(m.group(5)) + 1)}


TRANS = ("v_exp_", "v_log_", "v_rcp_", "v_rsq_", "v_sqrt_", "v_sin_", "v_cos_")


class I:
    pass


def parse(ln):
    ln = ln.split(";")[0].strip()
    if not ln or ln.endswith(":") or ln.startswith("."):
        return None
    p = ln.split(None, 1)
    i = I()
    i.text = ln
    i.mn = p[0]
    rest = p[1] if len(p) > 1 else ""
    ops = [o.strip() for o in rest.split(",")] if rest else []
    mods = ""
    if ops:
        q = ops[-1].split(None, 1)
        ops[-1] = q[0]
        mods = q[1] if len(q) > 1 else ""
    clean = []
    for o in ops:
        q = o.split(None, 1)
        clean.append(q[0])
        if len(q) > 1:
            mods += " " + q[1]
    ops = clean
    i.ops = ops
    i.mods = mods + " " + rest
    mn = i.mn
    i.kind = "other"
    i.dst = set()
    i.src = set()
    R = [_regs(o) for o in ops]
    if mn.startswith("v_mfma"):
        i.kind = "mfma"
        i.dst = R[0]
        i.A, i.B, i.C = R[1], R[2], R[3]
        i.src = R[1] | R[2] | R[3]
        i.passes = 8 if "32x32x16" in mn else 4 if "16x16x32" in mn else 2 if "4x4x4" in mn else None
        assert i.passes, mn
    elif mn.startswith("v_"):
        i.kind = "valu"
        if mn.startswith("v_cmp"):
            i.dst = R[0]
            i.src = set().union(*R[1:])
        elif mn.startswith(("v_permlane16_swap", "v_permlane32_swap")):
            i.dst = R[0] | R[1]
            i.src = R[0] | R[1]
        elif mn.startswith(("v_add_co", "v_sub_co", "v_addc_co")):
            i.dst = R[0] | R[1]
            i.src = set().union(*R[2:])
        else:
            i.dst = R[0]
            i.src = set().union(*R[1:]) if len(R) > 1 else set()
            if mn.startswith(("v_fmac", "v_dot2c", "v_writelane")):
                i.src |= R[0]
            if mn.startswith("v_cndmask") and len(ops) == 3:
                i.src |= {("s", "vcc")}
    elif mn.startswith(("buffer_", "global_")):
        i.kind = "vmem"
        i.lds = bool(re.search(r"\blds\b", i.mods)) or "load_lds" in mn
        if mn.startswith(("buffer_wbl2", "buffer_inv")):
            pass
        elif "load" in mn and not i.lds:
            i.dst = R[0]
            i.src = set().union(*R[1:])
        else:
            i.src = set().union(*R)
            if i.lds:
                i.src |= {("s", "m0")}
        i.store = "store" in mn
        i.wide = i.store and ("x3" in mn or "x4" in mn)
        i.data = R[0] if (i.store and mn.startswith("buffer_")) else (R[1] if i.store else set())
    elif mn.startswith("ds_"):
        i.kind = "ds"
        if mn.startswith(("ds_read", "ds_bpermute", "ds_swizzle", "ds_permute")):
            i.dst = R[0]
            i.src = set().union(*R[1:])
        else:
            i.src = set().union(*R)
    elif mn.startswith(("s_load", "s_memtime", "s_memrealtime", "s_buffer_load")):
        i.kind = "smem"
        i.dst = R[0]
        i.src = set().union(*R[1:]) if len(R) > 1 else set()
    elif mn.startswith("s_"):
        i.kind = "salu"
        if mn.startswith(("s_waitcnt", "s_nop", "s_barrier", "s_branch", "s_cbranch", "s_endpgm", "s_setprio", "s_sleep")):
            i.kind = "ctl"
        elif mn.startswith("s_cmp") or mn.startswith("s_bitcmp"):
            i.src = set().union(*R)
        elif "saveexec" in mn:
            i.dst = R[0] | {("s", "exec")}
            i.src = R[1] | {("s", "exec")}
        else:
            i.dst = R[0]
            i.src = set().union(*R[1:]) if len(R) > 1 else set()
    i.states = 1
    if mn == "s_nop":
        i.states = int(ops[0], 0) + 1
    i.dpp = ("row_" in i.mods or "quad_perm" in i.mods or "wave_" in i.mods) and i.kind == "valu"
    i.trans = mn.startswith(TRANS)
    i.sdwa = "sdwa" in mn or "dst_sel" in i.mods
    return i


def check_hazards(lines, name=""):
    ins = [x for x in (parse(l) for l in lines) if x]
    probs = []
    W = 22
    for n, c in enumerate(ins):
        dist = 0
        for k in range(n - 1, max(-1, n - W - 1), -1):
            p = ins[k]
            need = 0
            why = ""
            vd = {r for r in p.dst if r[0] in "va"}
            sd = {r for r in p.dst if r[0] == "s"}
            if p.kind == "valu":
                if c.kind == "mfma" and vd & c.src:
                    need, why = 2, "VALU->MFMA src"
                if c.kind == "valu" and c.dpp and vd & c.src:
                    need, why = max(need, 2), "VALU->DPP"
                if c.mn.startswith("v_permlane") and vd & c.src:
                    need, why = max(need, 2), "VALU->permlane"
                if c.mn.startswith(("v_readlane", "v_readfirstlane")) and vd & c.src:
                    need, why = max(need, 1), "VALU->readlane"
                if p.trans and c.kind == "valu" and not c.trans and vd & c.src:
                    need, why = max(need, 1), "trans->VALU"
                if p.sdwa and c.kind == "valu" and vd & (c.src | c.dst):
                    need, why = max(need, 1), "sdwa->VALU"
                if p.mn.startswith("v_dot") and vd & (c.src | c.dst) and c.kind in ("valu", "mfma", "vmem", "ds"):
                    if c.mn == p.mn:
                        ab = _regs(c.ops[1]) | _regs(c.ops[2])
                        if vd & ab:
                            need, why = max(need, 3), "dot->dot AB"
                    else:
                        need, why = max(need, 3), "dot->other"
                if sd and c.kind == "vmem" and sd & c.src:
                    need, why = max(need, 5), "VALU sgpr->VMEM"
                if sd and c.kind == "valu" and sd & c.src:
                    need, why = max(need, 2), "VALU sgpr->VALU"
                if sd and c.kind in ("salu", "smem") and sd & c.src and "saveexec" not in c.mn:
                    need, why = max(need, 1), "VALU sgpr->SALU (paranoid)"
            if p.kind == "mfma":
                P = p.passes
                raw = {2: 5, 4: 8, 8: 12}[P]
                if c.kind == "mfma":
                    if p.dst & (c.A | c.B):
                        need, why = raw, "MFMA D->MFMA A/B"
                    if p.dst & c.C:
                        if p.dst == c.C and c.passes == P:
                            nn = 2 if P == 2 else 0
                        else:
                            nn = {2: 4, 4: 6, 8: 10}[P]
                        if nn > need:
                            need, why = nn, "MFMA D->MFMA C"
                    if p.dst & c.dst and not (p.dst & c.C):
                        nn = {2: 4, 4: 6, 8: 10}[P]
                        if nn > need:
                            need, why = nn, "MFMA D->MFMA D WAW (paranoid)"
                elif c.kind in ("valu", "vmem", "ds") and p.dst & (c.src | c.dst):
                    need, why = raw, "MFMA D->VALU/mem"
                if c.kind == "valu" and p.C & c.dst:
                    nn = {2: 1, 4: 3, 8: 7}[P]
                    if nn > need:
                        need, why = nn, "MFMA C WAR"
            if p.kind == "vmem" and getattr(p, "wide", False) and p.data & c.dst:
                nn = 2 if c.kind == "valu" else 1
                if nn > need:
                    need, why = nn, "wide store data WAR"
            if p.kind == "salu" and ("s", "m0") in p.dst and c.kind == "vmem" and c.lds:
                need, why = max(need, 1), "m0->LDS DMA"
            if need > dist:
                probs.append(f"{name}: [{why}] need {need} have {dist}: '{p.text}' -> '{c.text}'")
            dist += p.states
            if dist > 20:
                break
    return probs


def check_waits(lines, name=""):
    ins = [x for x in (parse(l) for l in lines) if x]
    vm = []
    lg = []
    probs = []
    for c in ins:
        if c.mn == "s_waitcnt":
            m = re.search(r"vmcnt\((\d+)\)", c.text)
            if m:
                n = int(m.group(1))
                if len(vm) > n:
                    vm = vm[len(vm) - n:] if n else []
            m = re.search(r"lgkmcnt\((\d+)\)", c.text)
            if m:
                n = int(m.group(1))
                if n == 0:
                    lg = []
                else:
                    lds = [x for x in lg if not x[1]]
                    sm = [x for x in lg if x[1]]
                    if len(lds) > n:
                        lds = lds[len(lds) - n:]
                    lg = sm + lds
            continue
        touched = c.src | c.dst
        for d, t in vm:
            if d & touched:
                probs.append(f"{name}: vmcnt: '{c.text}' touches pending load '{t}'")
        for d, s, t in lg:
            if d & touched:
                probs.append(f"{name}: lgkmcnt: '{c.text}' touches pending '{t}'")
        if c.kind == "vmem":
            vm.append((c.dst, c.text))
            if len(vm) > 63:
                probs.append(f"{name}: vmcnt overflow at '{c.text}'")
        elif c.kind == "ds":
            lg.append((c.dst, False, c.text))
        elif c.kind == "smem":
            lg.append((c.dst, True, c.text))
    return probs
```

```python
import re
import sys
from asmlib import Asm, vr, ar, sr, weave, check_hazards, check_waits, parse

NAME = "interleave_layers__ssm_conv_h3__glu_gated_bilinear__prompt"

OPT = dict(
    diag=0,
    stop="",
    pmode="sc1",
    amode="sc1",
    late_a=1,
    poll_at=30,
    bar1_at=40,
)
for a in sys.argv[1:]:
    if "=" in a:
        k, v = a.split("=", 1)
        OPT[k] = type(OPT[k])(v) if k in OPT else v
OUT = OPT.get("out", f"cdna_kernels/{NAME}.s")

EPOCH = 0
FA = 0x1000
FB = 0x10000
FC = 0x20000
FP = 0x30000
STAMP = 0x80000
UT = 0x100000
Y2 = 0x300000
AB = 0x500000
PART = 0xC00000
WS_SIZE = 0x4000000
BLK = 28672
OOB = 0x7FF00000
SPIN = 0x20000

L_A0, L_A1 = 0, 32768
L_HX = 28672
L_U = 65536
L_H = L_U + 9216
L_SB = 98304
L_W2A, L_W2B = 32768, 65536
L_X = 8192
L_Y = 65536
LDS_BYTES = 163840

pQ, pK, pV, pSH, pH, pD, pBX, pWG, pWU, pWD, pOUT, pDBG, pWS = 4, 6, 8, 10, 12, 14, 16, 18, 20, 22, 24, 26, 28
rK, rV, rWS, rG1, rG2, rWG, rWU, rWD = 32, 36, 40, 44, 48, 52, 56, 60
sX, sR, sG, sM, sW, sN, sXCC, sCnt = 64, 65, 66, 67, 68, 69, 70, 71
sT0, sT1, sT2, sT3, sT4, sT5, sT6, sT7 = 72, 73, 74, 75, 76, 77, 78, 79
sF = 80
sNN = 88
sU0, sU1, sU2, sU3, sU4, sU5, sU6, sU7 = 90, 91, 92, 93, 94, 95, 96, 97
sFCP = 98
sB = 100
sSave = 30
STAMPS = [4, 6, 8, 10, 12, 16, 18, 20, 22, 26, 32, 34, 36, 38, 44, 46]

A = Asm()
uid = [0]


def lab(p):
    uid[0] += 1
    return f"L_{p}_{uid[0]}"


def stamp(i):
    if OPT["diag"]:
        return [f"s_memrealtime {sr(STAMPS[i], 2)}"]
    return []


def srd(r, p, size):
    return [f"s_mov_b32 {sr(r)}, {sr(p)}", f"s_and_b32 {sr(r + 1)}, {sr(p + 1)}, 0xffff",
            f"s_mov_b32 {sr(r + 2)}, {size}", f"s_mov_b32 {sr(r + 3)}, 0x20000"]


def md(mode):
    return (" " + mode) if mode else ""


def vpoll(vaddr, soff, vt, x2=False):
    L, D = lab("poll"), lab("polld")
    ld = "buffer_load_dwordx2" if x2 else "buffer_load_dword"
    return [f"s_mov_b32 {sr(sCnt)}, 0", L + ":",
            f"{ld} {vr(vt, 2 if x2 else 1)}, {vr(vaddr)}, {sr(rWS, 4)}, {soff} offen sc1",
            "s_waitcnt vmcnt(0)",
            f"v_cmp_ne_u32 vcc, {sr(sN)}, {vr(vt)}",
            f"s_add_u32 {sr(sCnt)}, {sr(sCnt)}, 1",
            "s_cmp_eq_u64 vcc, 0",
            f"s_cbranch_scc1 {D}",
            f"s_cmp_lt_u32 {sr(sCnt)}, {SPIN}",
            f"s_cbranch_scc1 {L}",
            D + ":"]


def auto_lgkm(seq, pending=()):
    q = [parse(p) for p in pending]
    out = []
    for ln in seq:
        if ln == "@LGKM0":
            out.append("s_waitcnt lgkmcnt(0)")
            q = []
            continue
        if ln.startswith("@DONE:"):
            key = ln[6:]
            idx = [k for k, x in enumerate(q) if x.text.startswith(key)]
            if idx:
                n = min(14, len(q) - 1 - idx[-1])
                out.append(f"s_waitcnt lgkmcnt({n})")
                q = q[len(q) - n:] if n else []
            continue
        i = parse(ln)
        if i is None:
            out.append(ln)
            continue
        if i.mn == "s_waitcnt":
            m = re.search(r"lgkmcnt\((\d+)\)", ln)
            if m:
                n = int(m.group(1))
                q = q[len(q) - n:] if n and len(q) > n else (q if n else [])
        t = i.src | i.dst
        idx = [k for k, x in enumerate(q) if x.dst & t]
        if idx:
            n = min(14, len(q) - 1 - idx[-1])
            out.append(f"s_waitcnt lgkmcnt({n})")
            q = q[len(q) - n:] if n else []
        out.append(ln)
        if i.kind == "ds":
            q.append(i)
    return out, [x.text for x in q]


def prologue():
    A(f"""
    s_cmp_ge_u32 s2, 256
    s_cbranch_scc1 L_end
    s_load_dwordx16 s[4:19], s[0:1], 0
    s_load_dwordx8 s[20:27], s[0:1], 64
    s_load_dwordx2 s[28:29], s[0:1], 96
    s_getreg_b32 {sr(sXCC)}, hwreg(HW_REG_XCC_ID)
    v_lshrrev_b32 v2, 6, v0
    v_and_b32 v1, 63, v0
    s_and_b32 {sr(sX)}, s2, 7
    v_readfirstlane_b32 {sr(sW)}, v2
    s_lshr_b32 {sr(sR)}, s2, 3
    s_and_b32 {sr(sM)}, {sr(sR)}, 15
    s_lshr_b32 {sr(sT0)}, {sr(sR)}, 4
    s_lshl_b32 {sr(sG)}, {sr(sX)}, 1
    s_add_u32 {sr(sG)}, {sr(sG)}, {sr(sT0)}
    s_and_b32 {sr(sXCC)}, {sr(sXCC)}, 15
    """)
    A(f"""
    v_mul_u32_u24 v2, 9363, v0
    v_lshrrev_b32 v2, 16, v2
    v_mul_u32_u24 v3, 7, v2
    v_sub_u32 v3, v0, v3
    s_mul_i32 {sr(sT0)}, {sr(sR)}, {64 * 896}
    s_mul_i32 {sr(sT1)}, {sr(sX)}, 112
    s_add_u32 {sr(sT0)}, {sr(sT0)}, {sr(sT1)}
    v_mul_u32_u24 v4, 1792, v2
    v_lshl_add_u32 v4, v3, 4, v4
    v_add_u32 v4, {sr(sT0)}, v4
    v_subrev_u32 v5, 2688, v4
    v_subrev_u32 v6, 1792, v4
    s_lshl_b32 {sr(sT1)}, {sr(sT1)}, 2
    v_lshl_add_u32 v7, v3, 6, {sr(sT1)}
    v_xor_b32 v9, 3, v2
    v_lshrrev_b32 v8, 2, v9
    v_xor_b32 v8, v8, v3
    v_lshlrev_b32 v8, 4, v8
    v_and_b32 v9, 3, v9
    v_lshl_add_u32 v8, v9, 2, v8
    v_lshl_add_u32 v8, v3, 10, v8
    s_waitcnt lgkmcnt(0)
    """)
    A.ext(srd(rK, pK, 1835008) + srd(rV, pV, 1835008) + srd(rG1, pSH, 3584) + srd(rWS, pWS, WS_SIZE))
    A.ext(stamp(0) if False else [])
    A(f"""
    buffer_load_dwordx4 v[12:15], v5, {sr(rK, 4)}, 0 offen
    buffer_load_dwordx4 v[16:19], v6, {sr(rK, 4)}, 0 offen
    buffer_load_dwordx4 v[20:23], v6, {sr(rK, 4)}, 0 offen offset:896
    buffer_load_dwordx4 v[24:27], v4, {sr(rK, 4)}, 0 offen
    buffer_load_dwordx4 v[28:31], v4, {sr(rK, 4)}, 0 offen offset:896
    buffer_load_dwordx4 v[32:35], v4, {sr(rV, 4)}, 0 offen
    buffer_load_dwordx4 v[36:39], v4, {sr(rV, 4)}, 0 offen offset:896
    buffer_load_dwordx4 v[40:43], v7, {sr(rG1, 4)}, 0 offen
    buffer_load_dwordx4 v[44:47], v7, {sr(rG1, 4)}, 0 offen offset:16
    buffer_load_dwordx4 v[48:51], v7, {sr(rG1, 4)}, 0 offen offset:32
    buffer_load_dwordx4 v[52:55], v7, {sr(rG1, 4)}, 0 offen offset:48
    buffer_load_dword v10, off, {sr(rWS, 4)}, 0 sc1
    s_cmp_ge_u32 {sr(sM)}, 14
    s_cbranch_scc1 L_row
    """)


def phase_a(younger, mid=()):
    K = [12, 16, 20, 24, 28]
    V = [32, 36]
    T = 40
    A(f"""
    s_mov_b32 {sr(sT0)}, 0x05040100
    s_mov_b32 {sr(sT1)}, 0x07060302
    s_mov_b32 {sr(sT2)}, 0xffff0000
    s_waitcnt vmcnt({younger})
    v_readfirstlane_b32 {sr(sN)}, v10
    """)
    A.ext(stamp(1))
    seq = []
    for e0 in range(0, 8, 2):
        d = e0 >> 1
        for h in (0, 1):
            sel = sr(sT1) if h else sr(sT0)
            P = 56 + 4 * h
            seq += [f"v_perm_b32 v{P}, v{K[2] + d}, v{K[3] + d}, {sel}",
                    f"v_perm_b32 v{P + 1}, v{K[0] + d}, v{K[1] + d}, {sel}",
                    f"v_perm_b32 v{P + 2}, v{K[3] + d}, v{K[4] + d}, {sel}",
                    f"v_perm_b32 v{P + 3}, v{K[1] + d}, v{K[2] + d}, {sel}"]
        for h in (0, 1):
            e = e0 + h
            P = 56 + 4 * h
            seq += [f"v_dot2_f32_bf16 v{64 + 2 * h}, v{P}, v{T + 2 * e}, 0",
                    f"v_dot2_f32_bf16 v{65 + 2 * h}, v{P + 2}, v{T + 2 * e}, 0"]
        for h in (0, 1):
            e = e0 + h
            P = 56 + 4 * h
            seq += [f"v_dot2_f32_bf16 v{64 + 2 * h}, v{P + 1}, v{T + 2 * e + 1}, v{64 + 2 * h}",
                    f"v_dot2_f32_bf16 v{65 + 2 * h}, v{P + 3}, v{T + 2 * e + 1}, v{65 + 2 * h}"]
        seq += [f"v_lshlrev_b32 v68, 16, v{V[0] + d}", f"v_lshlrev_b32 v69, 16, v{V[1] + d}",
                f"v_and_b32 v70, {sr(sT2)}, v{V[0] + d}", f"v_and_b32 v71, {sr(sT2)}, v{V[1] + d}"]
        seq += ["v_mul_f32 v64, v64, v68", "v_mul_f32 v65, v65, v69",
                "v_mul_f32 v66, v66, v70", "v_mul_f32 v67, v67, v71",
                f"v_cvt_pk_bf16_f32 v{72 + e0}, v65, v64", f"v_cvt_pk_bf16_f32 v{73 + e0}, v67, v66"]
    A.ext(seq)
    A(f"""
    s_mul_i32 {sr(sN)}, {sr(sN)}, 1664525
    s_add_u32 {sr(sN)}, {sr(sN)}, 1013904223
    s_mov_b32 {sr(sNN)}, {sr(sN)}
    s_mov_b32 {sr(sNN + 1)}, {sr(sN)}
    v_cmp_gt_u32 vcc, 224, v0
    s_and_saveexec_b64 {sr(sSave, 2)}, vcc
    """)
    for e in range(8):
        A(f"ds_write_b32 v8, v{72 + e} offset:{128 * e}")
    A(f"s_mov_b64 exec, {sr(sSave, 2)}")
    A.ext(mid)
    A(f"""
    v_lshrrev_b32 v4, 3, v0
    v_and_b32 v5, 7, v0
    v_lshrrev_b32 v6, 6, v0
    v_xor_b32 v6, v6, v5
    v_lshlrev_b32 v6, 4, v6
    v_lshl_add_u32 v2, v4, 7, v6
    v_xor_b32 v7, 64, v2
    v_lshlrev_b32 v3, 12, v4
    v_lshl_add_u32 v3, v5, 4, v3
    s_mul_i32 {sr(sT0)}, {sr(sX)}, {56 * 4096}
    s_lshl_b32 {sr(sT1)}, {sr(sR)}, 7
    s_add_u32 {sr(sT0)}, {sr(sT0)}, {sr(sT1)}
    s_add_u32 {sr(sT0)}, {sr(sT0)}, {UT}
    s_add_u32 {sr(sT1)}, {sr(sT0)}, {32 * 4096}
    s_waitcnt lgkmcnt(0)
    s_barrier
    ds_read_b128 v[12:15], v2
    ds_read_b128 v[16:19], v7 offset:4096
    v_mov_b32 v8, {sr(sN)}
    v_mov_b32 v9, {sr(sXCC)}
    s_lshl_b32 {sr(sT2)}, s2, 7
    s_add_u32 {sr(sT2)}, {sr(sT2)}, {FA}
    s_waitcnt lgkmcnt(1)
    buffer_store_dwordx4 v[12:15], v3, {sr(rWS, 4)}, {sr(sT0)} offen sc1
    s_cmp_eq_u32 {sr(sW)}, 3
    """)
    L = lab("a3")
    A(f"""
    s_cbranch_scc1 {L}
    s_waitcnt lgkmcnt(0)
    buffer_store_dwordx4 v[16:19], v3, {sr(rWS, 4)}, {sr(sT1)} offen sc1
    {L}:
    s_waitcnt vmcnt(0) lgkmcnt(0)
    s_barrier
    s_cmp_lg_u32 {sr(sW)}, 0
    """)
    L = lab("af")
    A(f"""
    s_cbranch_scc1 {L}
    buffer_store_dwordx2 v[8:9], off, {sr(rWS, 4)}, {sr(sT2)} sc1
    {L}:
    """)
    A.ext(stamp(2))


vWG, vWU, vWD, vTR0, vTR1, vTR2 = 170, 171, 172, 173, 174, 175
sM0W1, sM0W2 = sU0, sU1


def w1_issue(c):
    slot = c % 4
    o = []
    o.append(f"s_mov_b32 {sr(sT6)}, {32 * c * 3584}")
    o.append(f"s_mov_b32 {sr(sT7)}, {(32 * c + 4) * 3584 - 1024}")
    for mat, (va, r) in enumerate(((vWG, rWG), (vWU, rWU))):
        o.append(f"s_add_u32 m0, {sr(sM0W1)}, {slot * 16384 + mat * 8192}")
        o.append("s_nop 0")
        o.append(f"buffer_load_dwordx4 {vr(va)}, {sr(r, 4)}, {sr(sT6)} offen lds")
        o.append(f"buffer_load_dwordx4 {vr(va)}, {sr(r, 4)}, {sr(sT7)} offen offset:1024 lds")
    return o


def w1reg(tau, s):
    return tau * 112 + s * 4


def w1_read(c):
    slot = c % 4
    o = []
    for s in (0, 1):
        for tau in (0, 1):
            for e4 in (0, 1):
                o.append(f"ds_read_b64_tr_b16 {ar(w1reg(tau, 2 * c + s) + 2 * e4, 2)}, {vr(vTR1 if tau else vTR0)} "
                         f"offset:{slot * 16384 + (16 * s + 4 * e4) * 256}")
    return o


def w2reg(sig, T, n=4, off=0):
    idx = sig * 7 + T
    return ar(224 + 4 * idx + off, n) if idx < 8 else vr(176 + 4 * (idx - 8) + off, n)


def w2_issue(sig):
    base = (L_W2A if sig % 2 == 0 else L_W2B)
    o = [f"s_mov_b64 exec, {sr(sU2, 2)}"]
    f0 = 64 * (sig & 1) + 16 * (sig >> 1)
    for i in range(8):
        j = i % 4
        if j == 0:
            o.append(f"s_add_u32 m0, {sr(sM0W2)}, {base + i * 928}")
        o.append(f"s_mov_b32 {sr(sT6)}, {(f0 + i) * 896 - j * 928 + 4096}")
        o.append(f"buffer_load_dwordx4 {vr(vWD)}, {sr(rWD, 4)}, {sr(sT6)} offen offset:{j * 928} lds")
    o.append("s_mov_b64 exec, -1")
    return o


def w2_read(sig):
    off = 0 if sig % 2 == 0 else (L_W2B - L_W2A)
    o = []
    for T in range(7):
        for e4 in (0, 1):
            o.append(f"ds_read_b64_tr_b16 {w2reg(sig, T, 2, 2 * e4)}, {vr(vTR2)} offset:{off + e4 * 7424 + 8 * T}")
    return o


def w_setup():
    A(f"""
    v_lshrrev_b32 v56, 4, v1
    v_and_b32 v57, 15, v1
    v_lshlrev_b32 v58, 1, v56
    v_xor_b32 v58, v58, v57
    s_lshl_b32 {sr(sT0)}, {sr(sW)}, 3
    v_add_u32 v59, {sr(sT0)}, v56
    v_mul_u32_u24 v59, 3584, v59
    v_lshl_add_u32 v59, v58, 4, v59
    s_lshl_b32 {sr(sT1)}, {sr(sM)}, 8
    v_add_u32 {vr(vWG)}, {sr(sT1)}, v59
    v_xor_b32 {vr(vWU)}, 0x80, {vr(vWG)}
    s_lshl_b32 {sr(sM0W1)}, {sr(sW)}, 11
    s_add_u32 {sr(sM0W1)}, {sr(sM0W1)}, {L_SB}
    """)


def w_setup2():
    A(f"""
    v_lshrrev_b32 v56, 4, v1
    v_bfe_u32 v57, v1, 2, 2
    v_and_b32 v58, 3, v1
    v_and_b32 v59, 1, v56
    v_lshrrev_b32 v60, 1, v56
    v_lshrrev_b32 v61, 1, v58
    s_lshl_b32 {sr(sT0)}, {sr(sW)}, 2
    v_add_u32 v61, {sr(sT0)}, v61
    v_lshlrev_b32 v62, 1, v57
    v_xor_b32 v61, v61, v62
    v_lshlrev_b32 v62, 3, v59
    v_xor_b32 v61, v61, v62
    v_lshlrev_b32 v61, 4, v61
    v_and_b32 v62, 1, v58
    v_lshl_add_u32 v61, v62, 3, v61
    v_lshl_add_u32 v62, v60, 3, v57
    v_lshl_add_u32 v61, v62, 8, v61
    v_lshl_add_u32 v61, v59, 13, v61
    v_add_u32 {vr(vTR0)}, {L_SB}, v61
    v_xor_b32 {vr(vTR1)}, 32, {vr(vTR0)}
    v_lshlrev_b32 v62, 4, v60
    v_lshl_add_u32 v62, v59, 2, v62
    v_add_u32 v62, v62, v57
    v_mul_u32_u24 v62, 928, v62
    v_mul_u32_u24 v63, 56, v58
    s_mul_i32 {sr(sT0)}, {sr(sW)}, 224
    s_add_u32 {sr(sT0)}, {sr(sT0)}, {L_W2A}
    v_add3_u32 {vr(vTR2)}, v62, v63, {sr(sT0)}
    s_lshr_b32 {sr(sT0)}, {sr(sW)}, 1
    s_lshl_b32 {sr(sT0)}, {sr(sT0)}, 5
    s_and_b32 {sr(sT1)}, {sr(sW)}, 1
    s_lshl_b32 {sr(sT1)}, {sr(sT1)}, 3
    s_add_u32 {sr(sT0)}, {sr(sT0)}, {sr(sT1)}
    s_lshl_b32 {sr(sT1)}, {sr(sM)}, 7
    s_add_u32 {sr(sT0)}, {sr(sT0)}, {sr(sT1)}
    s_mul_i32 {sr(sT0)}, {sr(sT0)}, 896
    v_lshl_add_u32 {vr(vWD)}, v1, 4, {sr(sT0)}
    s_mul_i32 {sr(sM0W2)}, {sr(sW)}, {8 * 928}
    s_mov_b32 {sr(sU2)}, -1
    s_mov_b32 {sr(sU3)}, 0x00ffffff
    """)


def gemm_front():
    sP, sC0 = sU4, sU5
    A.ext(srd(rG2, pH, 1835008) + srd(rWG, pWG, 1605632) + srd(rWU, pWU, 1605632))
    A(f"""
    s_sub_u32 {sr(rWD)}, {sr(pWD)}, 4096
    s_subb_u32 {sr(rWD + 1)}, {sr(pWD + 1)}, 0
    s_and_b32 {sr(rWD + 1)}, {sr(rWD + 1)}, 0xffff
    s_mov_b32 {sr(rWD + 2)}, {1605632 + 4096}
    s_mov_b32 {sr(rWD + 3)}, 0x20000
    s_and_b32 {sr(sT0)}, {sr(sG)}, 1
    s_mul_i32 {sr(sT0)}, {sr(sT0)}, 14
    s_add_u32 {sr(sT0)}, {sr(sT0)}, {sr(sM)}
    s_mul_i32 {sr(sP)}, {sr(sX)}, 28
    s_add_u32 {sr(sP)}, {sr(sP)}, {sr(sT0)}
    s_lshl_b32 {sr(sC0)}, {sr(sP)}, 13
    s_add_u32 {sr(sT1)}, {sr(sC0)}, 4096
    v_lshlrev_b32 v94, 4, v0
    v_subrev_u32 v95, 4, v94
    v_min_u32 v95, 0x40000000, v95
    s_lshl_b32 {sr(sT2)}, {sr(sP)}, 2
    s_load_dword {sr(sU6)}, {sr(pD, 2)}, {sr(sT2)}
    buffer_load_dwordx4 v[80:83], v94, {sr(rG2, 4)}, {sr(sC0)} offen
    buffer_load_dword v84, v95, {sr(rG2, 4)}, {sr(sC0)} offen
    buffer_load_dwordx4 v[88:91], v94, {sr(rG2, 4)}, {sr(sT1)} offen
    buffer_load_dword v92, v95, {sr(rG2, 4)}, {sr(sT1)} offen
    """)
    w_setup()
    A.ext(w1_issue(0) + w1_issue(1))
    A.ext(stamp(0))
    w_setup2()
    mid = f"""
    s_waitcnt vmcnt(8)
    v_alignbit_b32 v96, v80, v84, 16
    v_alignbit_b32 v97, v81, v80, 16
    v_alignbit_b32 v98, v82, v81, 16
    v_alignbit_b32 v99, v83, v82, 16
    v_alignbit_b32 v100, v88, v92, 16
    v_alignbit_b32 v101, v89, v88, 16
    v_alignbit_b32 v102, v90, v89, 16
    v_alignbit_b32 v103, v91, v90, 16
    v_add_u32 v94, {L_H}, v94
    v_mov_b32 v104, 0
    v_mov_b32 v105, 0
    v_mov_b32 v106, 0
    v_mov_b32 v107, 0
    ds_write_b128 v94, v[80:83] offset:32
    ds_write_b128 v94, v[96:99] offset:4192
    ds_write_b128 v94, v[88:91] offset:{8320 + 32}
    ds_write_b128 v94, v[100:103] offset:{8320 + 4192}
    v_lshrrev_b32 v95, 5, v1
    v_mul_u32_u24 v95, 4608, v95
    v_and_b32 v93, 31, v1
    v_lshl_add_u32 v95, v93, 4, v95
    v_add_u32 v95, {L_U}, v95
    v_bfe_u32 v93, v1, 1, 2
    v_mul_u32_u24 v93, 4160, v93
    v_and_b32 v85, 1, v1
    v_lshl_add_u32 v93, v85, 4, v93
    v_add_u32 v93, {L_H}, v93
    ds_write_b128 v95, v[104:107]
    ds_write_b128 v93, v[104:107]
    """.split("\n")
    phase_a(12, mid)
    if OPT["stop"] == "A":
        A("s_branch L_done")
        return
    A.ext(w1_read(0) + w1_read(1))
    A.ext(w1_issue(2) + w1_issue(3))
    vAb, vBb, vAD = 160, 164, 176
    A(f"""
    v_and_b32 v56, 15, v1
    v_lshrrev_b32 v57, 4, v1
    v_and_b32 v58, 1, v56
    v_add_u32 v59, v56, v58
    v_lshlrev_b32 v59, 1, v59
    v_xor_b32 v58, 1, v58
    v_mul_u32_u24 v58, {4192 + 4 - 32}, v58
    v_add_u32 v59, v59, v58
    v_lshlrev_b32 v60, 4, v57
    v_sub_u32 v59, v59, v60
    s_lshr_b32 {sr(sT0)}, {sr(sW)}, 1
    s_and_b32 {sr(sT1)}, {sr(sW)}, 1
    s_mul_i32 {sr(sT2)}, {sr(sT0)}, 8320
    s_lshl_b32 {sr(sT3)}, {sr(sT1)}, 8
    s_add_u32 {sr(sT2)}, {sr(sT2)}, {sr(sT3)}
    s_add_u32 {sr(sT2)}, {sr(sT2)}, {L_H + 32 + 16}
    v_add_u32 {vr(vAb)}, {sr(sT2)}, v59
    v_add_u32 {vr(vAb + 1)}, 1024, {vr(vAb)}
    v_add_u32 {vr(vAb + 2)}, 2048, {vr(vAb)}
    v_add_u32 {vr(vAb + 3)}, 3072, {vr(vAb)}
    s_mul_i32 {sr(sT2)}, {sr(sT0)}, 4608
    s_sub_u32 {sr(sT2)}, {sr(sT2)}, {sr(sT3)}
    s_add_u32 {sr(sT2)}, {sr(sT2)}, {L_U + 480 - 192}
    v_lshl_add_u32 v60, v56, 5, v60
    v_add_u32 {vr(vBb)}, {sr(sT2)}, v60
    s_waitcnt lgkmcnt(0)
    s_lshl_b32 {sr(sT0)}, {sr(sT0)}, 4
    s_lshr_b32 {sr(sU6)}, {sr(sU6)}, {sr(sT0)}
    s_and_b32 {sr(sU6)}, {sr(sU6)}, 0xffff
    s_cmp_eq_u32 {sr(sT1)}, 0
    s_cselect_b32 {sr(sU6)}, {sr(sU6)}, 0
    v_lshrrev_b32 v58, 3, v56
    v_add_u32 v58, 2, v58
    v_and_b32 v59, 7, v56
    v_sub_u32 v59, 7, v59
    v_and_b32 v60, 1, v59
    v_lshlrev_b32 v60, 4, v60
    v_lshlrev_b32 v60, v60, {sr(sU6)}
    v_lshrrev_b32 v59, 1, v59
    v_cmp_eq_u32 vcc, v58, v57
    v_mov_b32 v61, 0
    v_mov_b32 v62, 0
    v_cndmask_b32 v60, v61, v60, vcc
    """)
    for d in range(4):
        A(f"""
        v_cmp_eq_u32 vcc, {d}, v59
        s_nop 1
        v_cndmask_b32 {vr(vAD + d)}, v61, v60, vcc
        """)
    A(f"""
    v_and_b32 v56, 31, v1
    v_lshlrev_b32 v56, 10, v56
    s_lshl_b32 {sr(sT0)}, {sr(sX)}, 7
    s_add_u32 {sr(sT0)}, {sr(sT0)}, {FA}
    v_lshlrev_b32 v57, 4, v1
    s_add_u32 {sr(sT1)}, {sr(sC0)}, {UT}
    s_lshr_b32 {sr(sT2)}, {sr(sW)}, 1
    s_and_b32 {sr(sT3)}, {sr(sW)}, 1
    s_lshl_b32 {sr(sT4)}, {sr(sW)}, 11
    s_add_u32 {sr(sT1)}, {sr(sT1)}, {sr(sT4)}
    s_mul_i32 {sr(sT2)}, {sr(sT2)}, 4608
    s_lshl_b32 {sr(sT3)}, {sr(sT3)}, 11
    s_add_u32 {sr(sT2)}, {sr(sT2)}, {sr(sT3)}
    s_add_u32 m0, {sr(sT2)}, {L_U + 512}
    """)
    A.ext(vpoll(56, sr(sT0), 58, x2=True))
    A.ext(stamp(3))
    A(f"""
    buffer_load_dwordx4 v57, {sr(rWS, 4)}, {sr(sT1)} offen sc1 lds
    buffer_load_dwordx4 v57, {sr(rWS, 4)}, {sr(sT1)} offen offset:1024 sc1 lds
    """)
    A("s_waitcnt vmcnt(0)\ns_barrier")
    A.ext(stamp(4))
    ACC = 180
    BUF = [(32, 64), (96, 128)]

    def loads(rp, buf):
        a, b = BUF[buf]
        LB = [f"ds_read_b128 {vr(b + 4 * m, 4)}, {vr(vBb)} offset:{512 * m + 64 * (3 - rp)}" for m in range(8)]
        LA = []
        for ip in range(8):
            o = 128 * (ip & 1) + 16 * rp
            LA += [f"ds_read2_b32 {vr(a + 4 * ip, 2)}, {vr(vAb + (ip >> 1))} offset0:{o} offset1:{o + 1}",
                   f"ds_read2_b32 {vr(a + 4 * ip + 2, 2)}, {vr(vAb + (ip >> 1))} offset0:{o + 2} offset1:{o + 3}"]
        return LB, LA

    seq = []
    LB, LA = loads(0, 0)
    seq += LB[:8]
    pre = w1_read(2) + w1_read(3)
    mf = [f"v_mfma_f32_16x16x32_bf16 {vr(ACC + 4 * j, 4)}, {vr(vAD, 4)}, {vr(BUF[0][1] + 4 * j, 4)}, 0" for j in range(8)]
    seq += weave(mf, {j: LA[2 * j:2 * j + 2] for j in range(8)})
    for rp in range(4):
        a, b = BUF[rp & 1]
        mf = [f"v_mfma_f32_16x16x32_bf16 {vr(ACC + 4 * (ip + m), 4)}, {vr(a + 4 * ip, 4)}, {vr(b + 4 * m, 4)}, {vr(ACC + 4 * (ip + m), 4)}"
              for m in range(8) for ip in range(8 - m)]
        fills = {}
        if rp < 3:
            LB, LA = loads(rp + 1, (rp + 1) & 1)
            nxt = LA + LB
            for k, x in enumerate(nxt):
                fills.setdefault(k + 2, []).append(x)
        if rp == 0:
            for k, x in enumerate(pre):
                fills.setdefault(k + 1, []).append(x)
        if rp == 1:
            fills.setdefault(0, []).extend(["@DONE:ds_read_b64_tr", "s_barrier"])
            iss = w1_issue(4) + w1_issue(5) + w1_issue(6) + w1_issue(7)
            for k in range(0, len(iss), 2):
                fills.setdefault(1 + k // 2, []).extend(iss[k:k + 2])
        seq += weave(mf, fills)
    seq, _ = auto_lgkm(seq)
    A.ext(seq)
    A.ext(stamp(5))
    A(f"""
    v_lshrrev_b32 v56, 4, v1
    v_lshlrev_b32 v57, 2, v56
    v_xor_b32 v57, v57, v1
    v_lshlrev_b32 v57, 4, v57
    s_lshl_b32 {sr(sT0)}, {sr(sW)}, 13
    v_add_u32 v57, {sr(sT0)}, v57
    v_and_b32 v56, 3, v1
    v_lshrrev_b32 v58, 2, v1
    v_lshlrev_b32 v59, 2, v56
    v_xor_b32 v58, v58, v59
    v_lshl_add_u32 v58, v56, 4, v58
    v_lshlrev_b32 v58, 4, v58
    s_lshl_b32 {sr(sT0)}, {sr(sW)}, 11
    v_add_u32 v58, {sr(sT0)}, v58
    """)
    for j in range(8):
        A(f"ds_write_b128 v57, {vr(ACC + 4 * j, 4)} offset:{1024 * j}")
    A(f"""
    v_lshlrev_b32 v59, 4, v1
    s_add_u32 {sr(sT0)}, {sr(sT0)}, {sr(sC0)}
    s_add_u32 {sr(sT0)}, {sr(sT0)}, {Y2}
    s_lshl_b32 {sr(sT1)}, {sr(sP)}, 7
    s_add_u32 {sr(sT1)}, {sr(sT1)}, {FB}
    v_mov_b32 v60, {sr(sN)}
    s_waitcnt lgkmcnt(0)
    s_barrier
    """)
    seq = []
    for jj in (0, 1):
        for w in range(4):
            seq.append(f"ds_read_b128 {vr(64 + 16 * jj + 4 * w, 4)}, v58 offset:{8192 * w + 1024 * jj}")
    for jj in (0, 1):
        b = 64 + 16 * jj
        for i in range(4):
            seq.append(f"v_add_f32 v{b + i}, v{b + i}, v{b + 4 + i}")
        for i in range(4):
            seq.append(f"v_add_f32 v{b + 8 + i}, v{b + 8 + i}, v{b + 12 + i}")
        for i in range(4):
            seq.append(f"v_cvt_pk_bf16_f32 v{b + i}, v{b + i}, v{b + 8 + i}")
        seq.append(f"buffer_store_dwordx4 {vr(b, 4)}, v59, {sr(rWS, 4)}, {sr(sT0)} offen offset:{1024 * jj} sc1")
    seq, _ = auto_lgkm(seq)
    A.ext(seq)
    L = lab("bf")
    A(f"""
    s_waitcnt vmcnt(0)
    s_barrier
    s_cmp_lg_u32 {sr(sW)}, 0
    s_cbranch_scc1 {L}
    buffer_store_dword v60, off, {sr(rWS, 4)}, {sr(sT1)} sc1
    {L}:
    """)
    A.ext(stamp(6))
    if OPT["stop"] in ("B", "C"):
        A("s_branch L_done")
        return
    A.ext(w1_read(4) + w1_read(5))
    A("s_waitcnt lgkmcnt(0)")
    A.ext(w1_read(6) + w1_read(7))
    A("s_waitcnt lgkmcnt(0)\ns_barrier")
    steps = [("w1", c) for c in range(8, 14)] + [("w2", s) for s in range(4)]

    def iss(st):
        return w1_issue(st[1]) if st[0] == "w1" else w2_issue(st[1])

    def cnt(st):
        return 4 if st[0] == "w1" else 8

    def rd(st):
        return w1_read(st[1]) if st[0] == "w1" else w2_read(st[1])

    inflight = 3
    issued = 0
    while issued < inflight:
        A.ext(iss(steps[issued]))
        issued += 1
    for k, st in enumerate(steps):
        younger = sum(cnt(s) for s in steps[k + 1:issued])
        A(f"s_waitcnt vmcnt({younger}) lgkmcnt(0)\ns_barrier")
        while issued < len(steps) and issued <= k + inflight and not (steps[issued][0] == "w2" and steps[issued][1] >= 2 and issued - 2 > k - 1):
            A.ext(iss(steps[issued]))
            issued += 1
        A.ext(rd(st))
    assert issued == len(steps)
    A("s_waitcnt lgkmcnt(0)")
    A.ext(stamp(7))


def ffn():
    acc1 = [0, 16]
    ACC2 = 32
    BF, NR, DIST = 88, 6, 5
    HF = 112
    HP = 144
    vBa, vHw, vHr, vP0, vP3, vDa, vN = 148, 149, 150, 151, 152, 153, 154
    sAsrc, sPsC, sPsP, sFPp, sM0a = sU0, sU1, sU2, sU3, sU4
    pm, am = md(OPT["pmode"]), md(OPT["amode"])

    def a2(eta, T):
        return ACC2 + (eta * 7 + T) * 4

    A(f"""
    v_lshlrev_b32 {vr(vBa)}, 4, v1
    s_lshl_b32 {sr(sT0)}, {sr(sW)}, 10
    s_add_u32 {sr(sT0)}, {sr(sT0)}, {L_HX}
    v_add_u32 {vr(vHw)}, {sr(sT0)}, {vr(vBa)}
    v_lshrrev_b32 v56, 4, v1
    v_and_b32 v57, 15, v1
    v_lshlrev_b32 v58, 9, v56
    v_lshl_add_u32 v58, v57, 4, v58
    v_add_u32 {vr(vHr)}, {L_HX}, v58
    v_lshrrev_b32 v58, 2, v57
    v_and_b32 v59, 3, v57
    v_lshl_add_u32 v59, v56, 2, v59
    s_lshl_b32 {sr(sT0)}, {sr(sW)}, 4
    v_add_u32 v59, {sr(sT0)}, v59
    v_mul_u32_u24 v60, 3072, v58
    v_lshl_add_u32 {vr(vP0)}, v59, 4, v60
    v_lshlrev_b32 v60, 9, v58
    v_lshl_add_u32 v60, v59, 3, v60
    v_add_u32 {vr(vP3)}, 24576, v60
    s_mul_i32 {sr(sT0)}, {sr(sW)}, 7168
    v_add_u32 {vr(vDa)}, {sr(sT0)}, {vr(vBa)}
    v_mov_b32 {vr(vN)}, {sr(sN)}
    s_mov_b32 {sr(sM0a)}, {sr(sT0)}
    s_mul_i32 {sr(sAsrc)}, {sr(sG)}, {8 * BLK}
    s_add_u32 {sr(sAsrc)}, {sr(sAsrc)}, {AB}
    s_lshl_b32 {sr(sT0)}, {sr(sG)}, 10
    s_add_u32 {sr(sT0)}, {sr(sT0)}, {FC}
    s_add_u32 {sr(sFCP)}, {sr(pWS)}, {sr(sT0)}
    s_addc_u32 {sr(sFCP + 1)}, {sr(pWS + 1)}, 0
    s_lshl_b32 {sr(sT0)}, {sr(sG)}, 6
    s_add_u32 {sr(sT0)}, {sr(sT0)}, {sr(sM)}
    s_mul_i32 {sr(sU5)}, {sr(sT0)}, {BLK}
    s_add_u32 {sr(sU5)}, {sr(sU5)}, {PART}
    s_mov_b32 {sr(sPsC)}, {sr(sU5)}
    s_add_u32 {sr(sPsP)}, {sr(sU5)}, {48 * BLK}
    s_lshl_b32 {sr(sU6)}, {sr(sG)}, 14
    s_lshl_b32 {sr(sT0)}, {sr(sM)}, 7
    s_add_u32 {sr(sU6)}, {sr(sU6)}, {sr(sT0)}
    s_lshl_b32 {sr(sT0)}, {sr(sW)}, 2
    s_add_u32 {sr(sU6)}, {sr(sU6)}, {sr(sT0)}
    s_add_u32 {sr(sU6)}, {sr(sU6)}, {FP}
    s_or_b32 {sr(sFPp)}, {sr(sU6)}, {15 * 128}
    s_mov_b32 {sr(sB)}, 0
    """)

    def fc_load():
        return [f"s_load_dwordx8 {sr(sF, 8)}, {sr(sFCP, 2)}, 0 glc"]

    def fc_check(slow):
        o = [f"s_xor_b64 {sr(sF + 2 * i, 2)}, {sr(sF + 2 * i, 2)}, {sr(sNN, 2)}" for i in range(4)]
        o += [f"s_or_b64 {sr(sF, 2)}, {sr(sF, 2)}, {sr(sF + 2, 2)}",
              f"s_or_b64 {sr(sF + 4, 2)}, {sr(sF + 4, 2)}, {sr(sF + 6, 2)}",
              f"s_or_b64 {sr(sF, 2)}, {sr(sF, 2)}, {sr(sF + 4, 2)}",
              f"s_cbranch_scc1 {slow}"]
        return o

    def fc_spin(entry, back):
        L = lab("fcs")
        o = [entry + ":", f"s_mov_b32 {sr(sCnt)}, 0", L + ":"] + fc_load() + [
            f"s_add_u32 {sr(sCnt)}, {sr(sCnt)}, 1",
            f"s_cmp_ge_u32 {sr(sCnt)}, {SPIN}",
            "s_waitcnt lgkmcnt(0)",
            f"s_cbranch_scc1 {back}"] + fc_check(L) + [f"s_branch {back}"]
        return o

    def a_dma():
        o = [f"s_mov_b32 m0, {sr(sM0a)}", f"s_add_u32 {sr(sT6)}, {sr(sAsrc)}, 4096"]
        for i in range(4):
            o.append(f"buffer_load_dwordx4 {vr(vDa)}, {sr(rWS, 4)}, {sr(sAsrc)} offen offset:{1024 * i} sc1 lds")
        o += [f"s_add_u32 m0, {sr(sM0a)}, 4096", "s_nop 0"]
        for i in range(3):
            o.append(f"buffer_load_dwordx4 {vr(vDa)}, {sr(rWS, 4)}, {sr(sT6)} offen offset:{1024 * i} sc1 lds")
        return o

    def bread(k):
        return f"ds_read_b128 {vr(BF + 4 * (k % NR), 4)}, {vr(vBa)} offset:{1024 * (k % 28)}"

    def outpack(eta, sslot, sslot2):
        g = []
        for p in range(3):
            t, u = a2(eta, 2 * p), a2(eta, 2 * p + 1)
            g.append([f"v_cvt_pk_bf16_f32 v{t}, v{t}, v{t + 1}", f"v_cvt_pk_bf16_f32 v{t + 1}, v{t + 2}, v{t + 3}"])
            g.append([f"v_cvt_pk_bf16_f32 v{t + 2}, v{u}, v{u + 1}", f"v_cvt_pk_bf16_f32 v{t + 3}, v{u + 2}, v{u + 3}"])
            g.append([f"buffer_store_dwordx4 {vr(t, 4)}, {vr(vP0)}, {sr(rWS, 4)}, {sr(sslot2 if eta else sslot)} offen offset:{1024 * p}{pm}"])
        t = a2(eta, 6)
        g.append([f"v_cvt_pk_bf16_f32 v{t}, v{t}, v{t + 1}", f"v_cvt_pk_bf16_f32 v{t + 1}, v{t + 2}, v{t + 3}"])
        g.append([f"buffer_store_dwordx2 {vr(t, 2)}, {vr(vP3)}, {sr(rWS, 4)}, {sr(sslot)} offen offset:{2048 * eta}{pm}"])
        return g

    def hproc(tau):
        a = acc1[tau]
        mul = [f"v_mul_f32 v{a + e}, v{a + e}, v{a + 8 + e}" for e in range(8)]
        cv = [f"v_cvt_pk_bf16_f32 v{HP + d}, v{a + 2 * d}, v{a + 2 * d + 1}" for d in range(4)]
        wr = [f"ds_write_b128 {vr(vHw)}, {vr(HP, 4)} offset:{32768 * tau}"]
        return mul, cv, wr

    def hread(sig, eta):
        return f"ds_read_b128 {vr(HF + (sig * 2 + eta) * 4, 4)}, {vr(vHr)} offset:{32768 * (sig >> 1) + 2048 * (sig & 1) + 256 * eta}"

    flagp = [f"buffer_store_dword {vr(vN)}, off, {sr(rWS, 4)}, {sr(sFPp)}{am}"]

    S0, B0 = lab("fc0s"), lab("fc0b")
    A.ext(fc_load() + ["s_waitcnt lgkmcnt(0)"] + fc_check(S0) + [B0 + ":"])
    A.ext(stamp(8))
    A.ext(a_dma())
    A(f"""
    s_add_u32 {sr(sAsrc)}, {sr(sAsrc)}, {BLK}
    s_add_u32 {sr(sFCP)}, {sr(sFCP)}, 128
    s_addc_u32 {sr(sFCP + 1)}, {sr(sFCP + 1)}, 0
    s_xor_b32 {sr(sM0a)}, {sr(sM0a)}, {L_A1}
    s_waitcnt vmcnt(0)
    s_barrier
    """)
    pend = [bread(k) for k in range(DIST)]
    A.ext(pend)
    A.ext(stamp(9))
    SL, BK = lab("fcs"), lab("fcb")
    g1 = []
    for k in range(56):
        tau, s = divmod(k, 28)
        c = "0" if s == 0 else vr(acc1[tau], 16)
        g1.append(f"v_mfma_f32_32x32x16_bf16 {vr(acc1[tau], 16)}, {ar(w1reg(tau, s), 4)}, {vr(BF + 4 * (k % NR), 4)}, {c}")
    f1 = {}

    def add(d, k, x):
        d.setdefault(k, []).extend(x if isinstance(x, list) else [x])

    bar1 = OPT["bar1_at"]
    pause = (bar1 - 1, bar1)
    late = []
    for k in range(56 - DIST):
        if k in pause:
            late.append(bread(k + DIST))
        else:
            if late:
                add(f1, k, late)
                late = []
            add(f1, k, bread(k + DIST))
    add(f1, 0, f"s_add_u32 {sr(sT5)}, {sr(sPsP)}, 12288")
    for n, grp in enumerate(outpack(1, sPsP, sT5)):
        add(f1, 1 + n, grp)
    mul, cv, wr = hproc(0)
    add(f1, 31, mul[:4])
    add(f1, 32, mul[4:])
    add(f1, 33, cv)
    add(f1, 34, wr)
    add(f1, OPT["poll_at"], fc_load())
    blk = ["@LGKM0"]
    if OPT["pmode"] == "":
        blk += ["s_waitcnt vmcnt(0)"]
    blk += ["s_barrier"]
    if OPT["pmode"] == "":
        blk += flagp
    add(f1, bar1, blk + fc_check(SL)[:4])
    add(f1, bar1 + 1, fc_check(SL)[4:] + [BK + ":"])
    dm = a_dma()
    add(f1, bar1 + 2, dm[:4])
    add(f1, bar1 + 3, dm[4:8])
    add(f1, bar1 + 4, dm[8:])
    add(f1, 50, [hread(0, 0), hread(0, 1)])
    add(f1, 51, [hread(1, 0), hread(1, 1)])
    add(f1, bar1 + 5, [f"s_add_u32 {sr(sB)}, {sr(sB)}, 1",
                       f"s_cmp_lt_u32 {sr(sB)}, 7",
                       f"s_cselect_b32 {sr(sT0)}, {BLK}, 0",
                       f"s_cselect_b32 {sr(sT1)}, 128, 0"])
    add(f1, bar1 + 6, [f"s_add_u32 {sr(sAsrc)}, {sr(sAsrc)}, {sr(sT0)}",
                       f"s_add_u32 {sr(sFCP)}, {sr(sFCP)}, {sr(sT1)}",
                       f"s_addc_u32 {sr(sFCP + 1)}, {sr(sFCP + 1)}, 0",
                       f"s_xor_b32 {sr(sM0a)}, {sr(sM0a)}, {L_A1}"])
    add(f1, 52, f"v_xor_b32 {vr(vBa)}, {L_A1}, {vr(vBa)}")
    p1 = [f"v_mfma_f32_16x16x32_bf16 {vr(a2(eta, T), 4)}, {w2reg(sig, T)}, {vr(HF + (sig * 2 + eta) * 4, 4)}, {'0' if sig == 0 else vr(a2(eta, T), 4)}"
          for sig in (0, 1) for eta in (0, 1) for T in range(7)]
    f2 = {}
    for k in range(4):
        add(f2, k, "s_nop 1")
    mul, cv, wr = hproc(1)
    for k in range(4):
        add(f2, 4 + k, mul[2 * k:2 * k + 2])
    add(f2, 8, cv[:2])
    add(f2, 9, cv[2:])
    add(f2, 10, wr)
    b2 = ["@DONE:ds_write"]
    if not OPT["late_a"]:
        b2 += ["s_waitcnt vmcnt(0)"]
    b2 += ["s_barrier"]
    if not OPT["late_a"] and OPT["pmode"] != "":
        b2 += flagp
    add(f2, 14, b2)
    add(f2, 15, hread(2, 0))
    add(f2, 16, hread(3, 0))
    add(f2, 17, hread(2, 1))
    add(f2, 18, hread(3, 1))
    p2 = [f"v_mfma_f32_16x16x32_bf16 {vr(a2(eta, T), 4)}, {w2reg(sig, T)}, {vr(HF + (sig * 2 + eta) * 4, 4)}, {vr(a2(eta, T), 4)}"
          for eta in (0, 1) for sig in (2, 3) for T in range(7)]
    f3 = {}
    at = 14
    if OPT["late_a"]:
        x = ["s_waitcnt vmcnt(0)", "s_barrier"]
        if OPT["pmode"] != "":
            x += flagp
        add(f3, at, x)
    for k in range(DIST):
        add(f3, at + 1 + 2 * k, bread(k))
    for n, grp in enumerate(outpack(0, sPsC, sPsC)):
        add(f3, 16 + n, grp)
    add(f3, 27, [f"s_mov_b32 {sr(sPsP)}, {sr(sPsC)}",
                 f"s_and_b32 {sr(sT0)}, {sr(sB)}, 3",
                 f"s_mul_i32 {sr(sT0)}, {sr(sT0)}, {16 * BLK}",
                 f"s_add_u32 {sr(sPsC)}, {sr(sU5)}, {sr(sT0)}",
                 f"s_mov_b32 {sr(sFPp)}, {sr(sU6)}",
                 f"s_add_u32 {sr(sU6)}, {sr(sU6)}, 2048",
                 f"s_cmp_lt_u32 {sr(sB)}, 8"])
    body = weave(g1, f1) + weave(p1, f2) + weave(p2, f3)
    body, pend2 = auto_lgkm(body, pend)
    assert pend2 == pend, (pend2, pend)
    LP = lab("blk")
    A(".p2align 6")
    A.label(LP)
    A.ext(body)
    A(f"s_cbranch_scc1 {LP}")
    global LOOPS
    LOOPS.append(body)
    A.ext(stamp(10))
    A(f"s_add_u32 {sr(sT5)}, {sr(sPsP)}, 12288\ns_nop 4")
    for grp in outpack(1, sPsP, sT5):
        A.ext(grp)
    A("s_waitcnt vmcnt(0) lgkmcnt(0)")
    A.ext(flagp)
    A.ext(stamp(11))
    A("s_branch L_done")
    A.ext(fc_spin(S0, B0))
    A.ext(fc_spin(SL, BK))


LOOPS = []


def ln_stats(X, S, RR):
    o = [f"v_pk_add_f32 {vr(S, 2)}, {vr(X, 2)}, {vr(X + 2, 2)}",
         f"v_pk_mul_f32 {vr(S + 2, 2)}, {vr(X, 2)}, {vr(X, 2)}",
         f"v_pk_fma_f32 {vr(S + 2, 2)}, {vr(X + 2, 2)}, {vr(X + 2, 2)}, {vr(S + 2, 2)}"]
    for k in range(2, 14):
        o += [f"v_pk_add_f32 {vr(S, 2)}, {vr(S, 2)}, {vr(X + 2 * k, 2)}",
              f"v_pk_fma_f32 {vr(S + 2, 2)}, {vr(X + 2 * k, 2)}, {vr(X + 2 * k, 2)}, {vr(S + 2, 2)}"]
    a, b, c, d = S, S + 2, S + 1, S + 3
    o += [f"v_add_f32 v{a}, v{S}, v{S + 1}", f"v_add_f32 v{b}, v{S + 2}, v{S + 3}", "s_nop 0"]
    for rot in (4, 8):
        o += [f"v_add_f32_dpp v{a}, v{a}, v{a} row_ror:{rot} row_mask:0xf bank_mask:0xf",
              f"v_add_f32_dpp v{b}, v{b}, v{b} row_ror:{rot} row_mask:0xf bank_mask:0xf", "s_nop 0"]
    for sw in ("v_permlane16_swap_b32", "v_permlane32_swap_b32"):
        o += [f"v_mov_b32 v{c}, v{a}", f"v_mov_b32 v{d}, v{b}", "s_nop 0",
              f"{sw} v{a}, v{c}", f"{sw} v{b}, v{d}",
              f"v_add_f32 v{a}, v{a}, v{c}", f"v_add_f32 v{b}, v{b}, v{d}"]
    o += [f"v_mul_f32 v{a}, {sr(sT7)}, v{a}", f"v_mul_f32 v{b}, {sr(sT7)}, v{b}",
          f"v_fma_f32 v{b}, -v{a}, v{a}, v{b}",
          f"v_max_f32 v{b}, 0, v{b}",
          f"v_add_f32 v{b}, 0x3727c5ac, v{b}",
          f"v_rsq_f32 v{RR}, v{b}", "s_nop 0",
          f"v_mul_f32 v{RR + 1}, v{a}, v{RR}",
          f"v_sub_f32 v{RR + 1}, 0, v{RR + 1}"]
    return o


def row_cu():
    ID, X, YF, XP, YP, NT, S, RR = 2, 4, 32, 60, 74, 88, 116, 122
    vXa, vXb, vQ, vY, vYs, vPa, vPb, vFP, vAe, vAo, vN, vFB = range(128, 140)
    QB = 144
    sRC, sBeta, sPhi, sQoff, sPo, sFPo, sAo, sFCo = sU0, sU1, sU2, sU3, sU4, sU5, sU6, sU7
    am = md(OPT["amode"])
    A.label("L_row")
    A.ext(srd(rG2, pQ, 1835008) + srd(rWD, pOUT, 1835008))
    A(f"""
    s_sub_u32 {sr(sRC)}, {sr(sM)}, 14
    v_lshrrev_b32 v56, 2, v1
    v_and_b32 v57, 3, v1
    s_lshl_b32 {sr(sT0)}, {sr(sG)}, 5
    s_lshl_b32 {sr(sT1)}, {sr(sRC)}, 4
    s_add_u32 {sr(sT0)}, {sr(sT0)}, {sr(sT1)}
    s_lshl_b32 {sr(sT2)}, {sr(sW)}, 2
    s_add_u32 {sr(sT3)}, {sr(sT0)}, {sr(sT2)}
    v_add_u32 v58, {sr(sT3)}, v57
    v_mul_u32_u24 v58, 896, v58
    v_mul_u32_u24 v59, 56, v56
    v_add_u32 {vr(vQ)}, v58, v59
    """)
    for b in range(4):
        A(f"s_mov_b32 {sr(sT4)}, {b * 512 * 896}")
        for p in range(3):
            A(f"buffer_load_dwordx4 {vr(QB + 16 * b + 4 * p, 4)}, {vr(vQ)}, {sr(rG2, 4)}, {sr(sT4)} offen offset:{16 * p}")
        A(f"buffer_load_dwordx2 {vr(QB + 16 * b + 12, 2)}, {vr(vQ)}, {sr(rG2, 4)}, {sr(sT4)} offen offset:48")
    A.ext(stamp(0))
    A(f"""
    v_lshlrev_b32 v58, 4, v0
    v_add_u32 {vr(vXa)}, {L_X}, v58
    v_lshlrev_b32 v58, 3, v0
    v_add_u32 {vr(vXb)}, {L_X + 12288}, v58
    v_bfe_u32 v58, v56, 1, 2
    v_xor_b32 v59, {sr(sW)}, v58
    v_lshl_add_u32 v59, v56, 2, v59
    v_lshlrev_b32 v59, 4, v59
    v_lshl_add_u32 v59, v57, 2, v59
    v_add_u32 {vr(vY)}, {L_Y}, v59
    v_xor_b32 v59, v57, v58
    v_lshlrev_b32 v59, 4, v59
    s_mov_b32 {sr(sT4)}, {14 * 8192}
    v_mul_lo_u32 v60, v56, {sr(sT4)}
    s_lshl_b32 {sr(sT4)}, {sr(sW)}, 9
    s_add_u32 {sr(sT4)}, {sr(sT4)}, {sr(sT0)}
    s_lshl_b32 {sr(sT4)}, {sr(sT4)}, 2
    v_add3_u32 {vr(vYs)}, v59, v60, {sr(sT4)}
    s_lshl_b32 {sr(sT4)}, {sr(sRC)}, 2
    s_add_u32 {sr(sT4)}, {sr(sT4)}, {sr(sW)}
    s_mul_i32 {sr(sT5)}, {sr(sT4)}, 3072
    v_lshl_add_u32 {vr(vPa)}, v1, 4, {sr(sT5)}
    s_lshl_b32 {sr(sT5)}, {sr(sT4)}, 9
    s_add_u32 {sr(sT5)}, {sr(sT5)}, 24576
    v_lshl_add_u32 {vr(vPb)}, v1, 3, {sr(sT5)}
    v_min_u32 v58, 13, v56
    v_lshlrev_b32 v58, 7, v58
    v_lshl_add_u32 {vr(vFP)}, v57, 2, v58
    s_add_u32 {sr(sT5)}, {sr(sT1)}, {sr(sT2)}
    v_add_u32 v58, {sr(sT5)}, v57
    v_lshlrev_b32 v58, 4, v58
    v_mul_u32_u24 v59, 7, v56
    v_lshrrev_b32 v60, 1, v59
    v_lshl_add_u32 v60, v60, 9, v58
    v_and_b32 v61, 1, v59
    v_lshl_add_u32 {vr(vAe)}, v61, 3, v60
    v_add_u32 v59, 1, v59
    v_lshrrev_b32 v60, 1, v59
    v_lshl_add_u32 v60, v60, 9, v58
    v_and_b32 v61, 1, v59
    v_lshl_add_u32 {vr(vAo)}, v61, 3, v60
    v_min_u32 v58, 55, v1
    s_mul_i32 {sr(sT5)}, {sr(sW)}, 56
    v_add_u32 v58, {sr(sT5)}, v58
    v_lshlrev_b32 {vr(vFB)}, 7, v58
    """)
    phase_a(12)
    if OPT["stop"] in ("A", "B"):
        A("s_branch L_done")
        return
    for b in range(4):
        for p in range(3):
            A(f"ds_write_b128 {vr(vXa)}, {vr(QB + 16 * b + 4 * p, 4)} offset:{14336 * b + 4096 * p}")
        A(f"ds_write_b64 {vr(vXb)}, {vr(QB + 16 * b + 12, 2)} offset:{14336 * b}")
        if b == 1:
            A("s_waitcnt lgkmcnt(0)")
    A(f"""
    v_and_b32 v57, 3, v1
    v_and_b32 v58, 1, v57
    v_lshlrev_b32 v58, 4, v58
    s_movk_i32 {sr(sT0)}, 0x3f80
    v_lshlrev_b32 v58, v58, {sr(sT0)}
    v_mov_b32 v59, 0
    v_cmp_gt_u32 vcc, 2, v57
    v_mov_b32 {vr(vN)}, {sr(sN)}
    s_mov_b32 {sr(sT7)}, 0x3b124925
    v_cndmask_b32 {vr(ID)}, v59, v58, vcc
    v_cndmask_b32 {vr(ID + 1)}, v58, v59, vcc
    s_mov_b32 {sr(sBeta)}, 0
    s_mov_b32 {sr(sPhi)}, 0
    s_mov_b32 {sr(sQoff)}, 0
    s_mul_i32 {sr(sAo)}, {sr(sG)}, {8 * BLK}
    s_add_u32 {sr(sAo)}, {sr(sAo)}, {AB}
    s_lshl_b32 {sr(sFCo)}, {sr(sG)}, 10
    s_lshl_b32 {sr(sT0)}, {sr(sRC)}, 4
    s_add_u32 {sr(sFCo)}, {sr(sFCo)}, {sr(sT0)}
    s_lshl_b32 {sr(sT0)}, {sr(sW)}, 2
    s_add_u32 {sr(sFCo)}, {sr(sFCo)}, {sr(sT0)}
    s_add_u32 {sr(sFCo)}, {sr(sFCo)}, {FC}
    s_lshl_b32 {sr(sFPo)}, {sr(sG)}, 14
    s_add_u32 {sr(sFPo)}, {sr(sFPo)}, {FP}
    s_waitcnt lgkmcnt(0)
    """)
    for w in range(3):
        L = lab("pr")
        A(f"s_cmp_lg_u32 {sr(sW)}, {w}\ns_cbranch_scc1 {L}\ns_setprio {3 - w}\n{L}:")
    LP, NOP, NOY, FIN, NXT = lab("rl"), lab("rnop"), lab("rnoy"), lab("rfin"), lab("rnx")
    body = Asm()
    B = body
    B(f"""
    ds_read_b128 {vr(XP, 4)}, {vr(vXa)}
    ds_read_b128 {vr(XP + 4, 4)}, {vr(vXa)} offset:4096
    ds_read_b128 {vr(XP + 8, 4)}, {vr(vXa)} offset:8192
    ds_read_b64 {vr(XP + 12, 2)}, {vr(vXb)}
    s_cmp_eq_u32 {sr(sPhi)}, 0
    s_cbranch_scc1 {NOP}
    s_mul_i32 {sr(sPo)}, {sr(sG)}, 4
    s_add_u32 {sr(sPo)}, {sr(sPo)}, {sr(sBeta)}
    s_mul_i32 {sr(sPo)}, {sr(sPo)}, {16 * BLK}
    s_add_u32 {sr(sPo)}, {sr(sPo)}, {PART}
    """)
    B.ext(vpoll(vFP, sr(sFPo), NT))
    for mu in range(14):
        for p in range(3):
            B(f"buffer_load_dwordx4 {ar(14 * mu + 4 * p, 4)}, {vr(vPa)}, {sr(rWS, 4)}, {sr(sPo)} offen offset:{1024 * p} sc1")
        B(f"buffer_load_dwordx2 {ar(14 * mu + 12, 2)}, {vr(vPb)}, {sr(rWS, 4)}, {sr(sPo)} offen sc1")
        if mu < 13:
            B(f"s_add_u32 {sr(sPo)}, {sr(sPo)}, {BLK}")
    B(f"s_add_u32 {sr(sFPo)}, {sr(sFPo)}, 2048")
    B(f"{NOP}:")
    B("s_waitcnt lgkmcnt(0)")
    for T in range(7):
        B(f"v_mfma_f32_4x4x4_16b_bf16 {vr(X + 4 * T, 4)}, {vr(ID, 2)}, {vr(XP + 2 * T, 2)}, 0")
    NOS = lab("rnos")
    B(f"s_cmp_eq_u32 {sr(sPhi)}, 0\ns_cbranch_scc1 {NOS}")
    for mu in range(14):
        B(f"s_waitcnt vmcnt({4 * (13 - mu)})")
        for T in range(7):
            B(f"v_mfma_f32_4x4x4_16b_bf16 {vr(X + 4 * T, 4)}, {vr(ID, 2)}, {ar(14 * mu + 2 * T, 2)}, {vr(X + 4 * T, 4)}")
    B(f"{NOS}:")
    B(f"s_cmp_eq_u32 {sr(sPhi)}, 2\ns_nop 3\ns_cbranch_scc1 {FIN}")
    B.ext(ln_stats(X, S, RR))
    B(f"s_or_b32 {sr(sT0)}, {sr(sPhi)}, {sr(sBeta)}\ns_cmp_lg_u32 {sr(sT0)}, 0\ns_cbranch_scc1 {NOY}")
    B(f"s_mov_b32 {sr(sT0)}, {FB}\ns_mul_i32 {sr(sT1)}, {sr(sW)}, 14336")
    B.ext(stamp(3))
    B.ext(vpoll(vFB, sr(sT0), NT))
    B("s_barrier")
    B.ext(stamp(4))
    for i in range(14):
        j = i % 4
        if j == 0:
            B(f"s_add_u32 m0, {sr(sT1)}, {L_Y + 1024 * i}")
        B(f"s_mov_b32 {sr(sT0)}, {Y2 + 8192 * i - 1024 * j}")
        B(f"buffer_load_dwordx4 {vr(vYs)}, {sr(rWS, 4)}, {sr(sT0)} offen offset:{1024 * j} sc1 lds")
    E = lab("ep")
    B(f"""
    s_or_b32 {sr(sT0)}, {sr(sG)}, {sr(sRC)}
    s_or_b32 {sr(sT0)}, {sr(sT0)}, {sr(sW)}
    s_cmp_lg_u32 {sr(sT0)}, 0
    s_cbranch_scc1 {E}
    buffer_store_dword {vr(vN)}, off, {sr(rWS, 4)}, 0 sc1
    {E}:
    s_waitcnt vmcnt(0)
    s_barrier
    """)
    B.ext(stamp(5))
    B(f"{NOY}:")
    for i in range(14):
        B(f"ds_read_b32 {vr(YP + i)}, {vr(vY)} offset:{1024 * i}")
    nrm = [f"v_pk_fma_f32 {vr(NT + 2 * k, 2)}, {vr(X + 2 * k, 2)}, {vr(RR, 2)}, {vr(RR, 2)} op_sel:[0,0,1] op_sel_hi:[1,0,1]" for k in range(14)]
    B.ext(nrm[:7])
    B("s_waitcnt lgkmcnt(0)")
    for T in range(7):
        B(f"v_mfma_f32_4x4x4_16b_bf16 {vr(YF + 4 * T, 4)}, {vr(ID, 2)}, {vr(YP + 2 * T, 2)}, 0")
        B(nrm[7 + T])
    for k in range(14):
        B(f"v_pk_fma_f32 {vr(X + 2 * k, 2)}, {vr(NT + 2 * k, 2)}, {vr(YF + 2 * k, 2)}, {vr(X + 2 * k, 2)}")
    B.ext(ln_stats(X, S, RR))
    for k in range(14):
        B(f"v_pk_fma_f32 {vr(NT + 2 * k, 2)}, {vr(X + 2 * k, 2)}, {vr(RR, 2)}, {vr(RR, 2)} op_sel:[0,0,1] op_sel_hi:[1,0,1]")
    for i in range(7):
        B(f"v_cvt_pk_bf16_f32 v{YP + 2 * i}, v{NT + 4 * i}, v{NT + 4 * i + 1}")
        B(f"v_cvt_pk_bf16_f32 v{YP + 2 * i + 1}, v{NT + 4 * i + 2}, v{NT + 4 * i + 3}")
        B(f"buffer_store_dwordx2 {vr(YP + 2 * i, 2)}, {vr(vAo if i & 1 else vAe)}, {sr(rWS, 4)}, {sr(sAo)} offen offset:{512 * (i >> 1)}{am}")
    for k in range(14):
        B(f"v_cvt_pk_bf16_f32 v{XP + k}, v{X + 2 * k}, v{X + 2 * k + 1}")
    B(f"""
    ds_write_b128 {vr(vXa)}, {vr(XP, 4)}
    ds_write_b128 {vr(vXa)}, {vr(XP + 4, 4)} offset:4096
    ds_write_b128 {vr(vXa)}, {vr(XP + 8, 4)} offset:8192
    ds_write_b64 {vr(vXb)}, {vr(XP + 12, 2)}
    s_waitcnt vmcnt(0)
    buffer_store_dword {vr(vN)}, off, {sr(rWS, 4)}, {sr(sFCo)}{am}
    s_add_u32 {sr(sAo)}, {sr(sAo)}, {BLK}
    s_add_u32 {sr(sFCo)}, {sr(sFCo)}, 128
    s_branch {NXT}
    {FIN}:
    """)
    for k in range(14):
        B(f"v_cvt_pk_bf16_f32 v{XP + k}, v{X + 2 * k}, v{X + 2 * k + 1}")
    for p in range(3):
        B(f"buffer_store_dwordx4 {vr(XP + 4 * p, 4)}, {vr(vQ)}, {sr(rWD, 4)}, {sr(sQoff)} offen offset:{16 * p}")
    B(f"buffer_store_dwordx2 {vr(XP + 12, 2)}, {vr(vQ)}, {sr(rWD, 4)}, {sr(sQoff)} offen offset:48")
    B(f"s_add_u32 {sr(sQoff)}, {sr(sQoff)}, {512 * 896}")
    B(f"{NXT}:")
    if OPT["diag"]:
        for ph, bt, st in ((0, 0, 6), (0, 3, 7), (1, 0, 8), (1, 1, 9), (1, 2, 10), (1, 3, 11), (2, 0, 12), (2, 3, 13)):
            L = lab("st")
            B(f"s_lshl_b32 {sr(sT0)}, {sr(sPhi)}, 2\ns_add_u32 {sr(sT0)}, {sr(sT0)}, {sr(sBeta)}\ns_cmp_lg_u32 {sr(sT0)}, {ph * 4 + bt}\ns_cbranch_scc1 {L}")
            B.ext(stamp(st))
            B(f"{L}:")
    last = 1 if OPT["stop"] == "C" else 3
    B(f"""
    s_add_u32 {sr(sBeta)}, {sr(sBeta)}, 1
    s_cmp_eq_u32 {sr(sBeta)}, 4
    s_movk_i32 {sr(sT0)}, 14336
    s_cselect_b32 {sr(sT0)}, {(-3 * 14336) & 0xffffffff}, {sr(sT0)}
    s_cselect_b32 {sr(sT1)}, 1, 0
    s_cselect_b32 {sr(sBeta)}, 0, {sr(sBeta)}
    s_add_u32 {sr(sPhi)}, {sr(sPhi)}, {sr(sT1)}
    s_waitcnt lgkmcnt(0)
    v_add_u32 {vr(vXa)}, {sr(sT0)}, {vr(vXa)}
    v_add_u32 {vr(vXb)}, {sr(sT0)}, {vr(vXb)}
    v_add_u32 {vr(vY)}, {sr(sT0)}, {vr(vY)}
    s_cmp_lt_u32 {sr(sPhi)}, {last}
    """)
    A(".p2align 6")
    A.label(LP)
    A.ext(B.lines)
    A(f"s_cbranch_scc1 {LP}")
    LOOPS.append(B.lines)


def finish():
    A.label("L_done")
    if OPT["diag"]:
        A.ext(stamp(15))
        A(f"""
        s_lshl_b32 {sr(sT0)}, s2, 2
        s_add_u32 {sr(sT0)}, {sr(sT0)}, {sr(sW)}
        s_lshl_b32 {sr(sT0)}, {sr(sT0)}, 7
        s_add_u32 {sr(sT0)}, {sr(sT0)}, {STAMP}
        s_waitcnt lgkmcnt(0)
        """)
        for i, s in enumerate(STAMPS):
            A(f"v_mov_b32 v2, {sr(s)}\nbuffer_store_dword v2, off, {sr(rWS, 4)}, {sr(sT0)} offset:{4 * i}")
        A(f"v_mov_b32 v2, {sr(sXCC)}\nbuffer_store_dword v2, off, {sr(rWS, 4)}, {sr(sT0)} offset:64")
    A.label("L_end")
    A("s_endpgm")


HEADER = """; Kernarg layout for this problem (104 bytes, ptrs only, base s[0:1]):
;   offset   0: d_in[0] A_q  shape=(1, 2048, 448) dtype=bfloat16 strides=(1835008, 896, 2) contiguous=True
;   offset   8: d_in[1] A_k  shape=(1, 2048, 448) dtype=bfloat16 strides=(1835008, 896, 2) contiguous=True
;   offset  16: d_in[2] A_v  shape=(1, 2048, 448) dtype=bfloat16 strides=(1835008, 896, 2) contiguous=True
;   offset  24: d_in[3] A_shift_k  shape=(448, 4) dtype=bfloat16 strides=(8, 2) contiguous=True
;   offset  32: d_in[4] A_ssm_k  shape=(448, 2048) dtype=bfloat16 strides=(4096, 2) contiguous=True
;   offset  40: d_in[5] A_ssm_D  shape=(448,) dtype=bfloat16 strides=(2,) contiguous=True
;   offset  48: d_in[6] B_x  shape=(1, 2048, 448) dtype=bfloat16 strides=(1835008, 896, 2) contiguous=True
;   offset  56: d_in[7] B_w_gate  shape=(448, 1792) dtype=bfloat16 strides=(3584, 2) contiguous=True
;   offset  64: d_in[8] B_w_up  shape=(448, 1792) dtype=bfloat16 strides=(3584, 2) contiguous=True
;   offset  72: d_in[9] B_w_down  shape=(1792, 448) dtype=bfloat16 strides=(896, 2) contiguous=True
;   offset  80: d_out     shape=(1, 2048, 448) dtype=bfloat16 (2 bytes/elem)
;   offset  88: d_debug   256 bytes
;   offset  96: d_ws      268435456 bytes workspace
; One persistent launch, one workgroup per CU (generated by a script of my own).
; @launch grid=(256,1,1) block=(256,1,1) lds=%d
.amdgcn_target "amdgcn-amd-amdhsa--gfx950"
.text
.globl %s_kernel
.p2align 8
.type %s_kernel,@function
%s_kernel:
""" % (LDS_BYTES, NAME, NAME, NAME)

FOOTER = """.section .rodata,"a"
.p2align 6
.amdhsa_kernel %s_kernel
  .amdhsa_next_free_vgpr 512
  .amdhsa_next_free_sgpr 102
  .amdhsa_accum_offset 256
  .amdhsa_group_segment_fixed_size 0
  .amdhsa_kernarg_size 104
  .amdhsa_user_sgpr_count 2
  .amdhsa_user_sgpr_kernarg_segment_ptr 1
  .amdhsa_system_sgpr_workgroup_id_x 1
.end_amdhsa_kernel
""" % NAME


def main():
    for t in range(256):
        assert (t * 9363) >> 16 == t // 7
    prologue()
    gemm_front()
    if OPT["stop"] == "":
        ffn()
    row_cu()
    finish()
    probs = check_hazards(A.lines, "lin")
    for k, body in enumerate(LOOPS):
        probs += check_hazards(body[-40:] + body[:40], f"backedge{k}")
    probs += check_waits(A.lines, "lin")
    for p in probs:
        print("PROBLEM", p)
    open(OUT, "w").write(HEADER + A.text() + FOOTER)
    n = sum(1 for l in A.lines if parse(l))
    print(f"wrote {OUT}: {n} instructions, {len(probs)} problems")


main()
```
